```python
import torch

def _softmax(x, axis=-1):
    return torch.softmax(x, dim=axis)
def _gelu(x):
    return torch.nn.functional.gelu(x, approximate="tanh")
def _silu(x):
    return torch.nn.functional.silu(x)
def _sigmoid(x):
    return torch.sigmoid(x)
def _layernorm(x, axis=-1, eps=1e-5):
    m = x.mean(dim=axis, keepdim=True)
    v = x.var(dim=axis, keepdim=True, unbiased=False)
    return (x - m) / torch.sqrt(v + eps)
def _scatter_add(tgt, idx, src, axis=0):
    return tgt.clone().index_add_(axis, idx, src)
def _segment_sum(src, seg, n):
    out = torch.zeros((n,) + src.shape[1:], dtype=src.dtype)
    return out.index_add_(0, seg, src)
def _pad(x, pw):
    flat = tuple(v for pair in reversed(pw) for v in pair)
    return torch.nn.functional.pad(x, flat)

kernel_name = 'recurrent_scan__linear_kernel_hedgehog__dense_activation_mish__prompt'

def setup_inputs():

    _w = (lambda a: (lambda t: t.to(torch.bfloat16) if t.is_floating_point() else t)(torch.as_tensor(a)))
    def _A_setup():
        B, S, D, H = 1, 2048, 1024, 32
        Dh = D // H
        return {
            "x": _w((lambda *s: torch.randn(*s, dtype=torch.bfloat16) * 0.05)(B, S, D)),
            "wqkv": _w((lambda *s: torch.randn(*s, dtype=torch.bfloat16) * 0.2)(D, 3 * D)),
            "w_phi": _w((lambda *s: torch.randn(*s, dtype=torch.bfloat16) * 0.2)(H, Dh, Dh) * (Dh ** -0.5)),
            "wo": _w((lambda *s: torch.randn(*s, dtype=torch.bfloat16) * 0.2)(D, D)),
        }
    _A_in = _A_setup()

    def _B_setup():
        B, S, D, F = 1, 2048, 1024, 3584
        return {
            "x": _w((lambda *s: torch.randn(*s, dtype=torch.bfloat16) * 0.05)(B, S, D)),
            "w1": _w((lambda *s: torch.randn(*s, dtype=torch.bfloat16) * 0.4)(D, F) * (D ** -0.5)),
            "b1": _w((lambda *s: torch.randn(*s, dtype=torch.bfloat16) * 0.2)(F)),
            "w2": _w((lambda *s: torch.randn(*s, dtype=torch.bfloat16) * 0.1)(F, D) * (F ** -0.5)),
        }
    _B_in = _B_setup()

    return {
        "A_x": _A_in["x"],
        "A_wqkv": _A_in["wqkv"],
        "A_w_phi": _A_in["w_phi"],
        "A_wo": _A_in["wo"],
        "B_x": _B_in["x"],
        "B_w1": _B_in["w1"],
        "B_b1": _B_in["b1"],
        "B_w2": _B_in["w2"],
    }

def reference(A_x, A_wqkv, A_w_phi, A_wo, B_x, B_w1, B_b1, B_w2):
    def _A_ref(x, wqkv, w_phi, wo):
        B, S, D = x.shape
        H = 32; Dh = D // H
        qkv = (lambda x, *d: x.permute(*d))((x @ wqkv).reshape(B, S, 3, H, Dh), 2, 0, 3, 1, 4)
        q, k, v = qkv[0], qkv[1], qkv[2]
        pq = torch.einsum("bhsd,hdf->bhsf", q, w_phi)
        pk = torch.einsum("bhsd,hdf->bhsf", k, w_phi)
        phi_q = torch.concatenate([_softmax(pq, axis=-1), _softmax(-pq, axis=-1)], axis=-1)
        phi_k = torch.concatenate([_softmax(pk, axis=-1), _softmax(-pk, axis=-1)], axis=-1)
        kv = torch.einsum("bhsf,bhsd->bhfd", phi_k, v)
        z  = torch.einsum("bhsf->bhf", phi_k)
        num = torch.einsum("bhqf,bhfd->bhqd", phi_q, kv)
        den = torch.einsum("bhqf,bhf->bhq", phi_q, z)[..., None] + 1e-6
        o = num / den
        return (lambda x, *d: x.permute(*d))(o, 0, 2, 1, 3).reshape(B, S, D) @ wo

    def _B_ref(x, w1, b1, w2):
        h = torch.einsum("bsd,df->bsf", x, w1) + b1
        sp = torch.log1p(torch.exp(-torch.abs(h))) + torch.where(h > 0, h, torch.zeros_like(h))
        act = h * torch.tanh(sp)
        return torch.einsum("bsf,fd->bsd", act, w2)

    x = A_x
    xn = _layernorm(x, axis=-1)
    s = _A_ref(xn, A_wqkv, A_w_phi, A_wo)
    g = _silu(_B_ref(xn, B_w1, B_b1, B_w2))
    return x + s * g
```

```python
NAME = "recurrent_scan__linear_kernel_hedgehog__dense_activation_mish__prompt"

class Asm:
    def __init__(self):
        self.lines = []
        self.nlabel = 0
    def __call__(self, s):
        for l in s.split("\n"):
            l = l.strip()
            if l:
                self.lines.append("    " + l if not l.endswith(":") else l)
    def label(self, base="L"):
        self.nlabel += 1
        return f"{base}_{self.nlabel}"
    def text(self):
        return "\n".join(self.lines) + "\n"

def kernel_text(name, body, vgpr, sgpr=102, accum=None, wgy=False):
    if accum is None:
        accum = (vgpr + 3) // 4 * 4
    t = f""".text
.globl {name}
.p2align 8
.type {name},@function
{name}:
{body}"""
    d = f""".section .rodata,"a"
.p2align 6
.amdhsa_kernel {name}
  .amdhsa_next_free_vgpr {vgpr}
  .amdhsa_next_free_sgpr {sgpr}
  .amdhsa_accum_offset {accum}
  .amdhsa_group_segment_fixed_size 0
  .amdhsa_kernarg_size 88
  .amdhsa_user_sgpr_count 2
  .amdhsa_user_sgpr_kernarg_segment_ptr 1
  .amdhsa_system_sgpr_workgroup_id_x 1
  .amdhsa_float_denorm_mode_32 3
  .amdhsa_float_denorm_mode_16_64 3
.end_amdhsa_kernel
"""
    return t, d

def file_text(header_comments, kernels):
    out = "".join("; " + c + "\n" for c in header_comments)
    out += '.amdgcn_target "amdgcn-amd-amdhsa--gfx950"\n'
    ds = []
    for k in kernels:
        t, d = kernel_text(*k)
        out += t
        ds.append(d)
    out += "".join(ds)
    return out

def srd(a, d, base, nbytes):
    a(f"s_mov_b32 s{d}, s{base}")
    a(f"s_and_b32 s{d+1}, s{base+1}, 0xffff")
    a(f"s_mov_b32 s{d+2}, {nbytes:#x}")
    a(f"s_mov_b32 s{d+3}, 0x00020000")
```

```python
from prog import *
ACT = 0x0
O_OFF = 0xE00000
STAT4 = 0x1200000
RSTD = 0x1208000
CS = 0x1210000
KVP = 0x1250000
XCH = 0x1600000
WS_SIZE = 0x10000000
LOG2E = 0x3fb8aa3b
K1_LDS = 135168
MF = "v_mfma_f32_16x16x32_bf16"

def q(r, n=4): return f"v[{r}:{r+n-1}]"

def srd(p, d, base, nbytes):
    p(f"s_mov_b32 s{d}, s{base}\ns_and_b32 s{d+1}, s{base+1}, 0xffff\ns_mov_b32 s{d+2}, {nbytes:#x}\ns_mov_b32 s{d+3}, 0x00020000")

def allreduce64_add(p, v, t):
    for sh in (8, 4, 2, 1):
        p(f"v_add_f32_dpp v{v}, v{v}, v{v} row_ror:{sh} row_mask:0xf bank_mask:0xf")
    p(f"v_mov_b32 v{t}, v{v}\nv_permlane16_swap_b32 v{v}, v{t}\nv_add_f32 v{v}, v{v}, v{t}")
    p(f"v_mov_b32 v{t}, v{v}\nv_permlane32_swap_b32 v{v}, v{t}\nv_add_f32 v{v}, v{v}, v{t}")

def allreduce4x(p, op, groups):
    for A, B, C, D in groups:
        p(f"v_permlane32_swap_b32 v{A}, v{B}\nv_permlane32_swap_b32 v{C}, v{D}")
    for A, B, C, D in groups:
        p(f"{op} v{A}, v{A}, v{B}\n{op} v{C}, v{C}, v{D}")
    for A, B, C, D in groups:
        p(f"v_permlane16_swap_b32 v{A}, v{C}")
    for A, B, C, D in groups:
        p(f"{op} v{A}, v{A}, v{C}")
    for A, B, C, D in groups:
        p(f"v_mov_b32 v{C}, v{A}")
    for A, B, C, D in groups:
        p(f"v_permlane16_swap_b32 v{A}, v{C}")
    for A, B, C, D in groups:
        p(f"v_mov_b32 v{B}, v{A}\nv_mov_b32 v{D}, v{C}")
    for A, B, C, D in groups:
        p(f"v_permlane32_swap_b32 v{A}, v{B}\nv_permlane32_swap_b32 v{C}, v{D}")

V_LANE = 1
V_OX = 2
V_OW = 6
V_XA = 8
V_WA = 10
V_T = 15
V_ONES = 16
V_CSA = 20
V_T2 = 28
ACC = 32
FR = (144, 188)
S_X, S_W, S_WS, S_DBG, S_AUX = 20, 24, 28, 32, 36
S_R, S_C, S_WV, S_WM, S_WN, S_SOX, S_SOW, S_KT, S_MX, S_LOOP = 40, 41, 42, 43, 44, 45, 46, 47, 48, 49
S_T = 50
NST = 16

def stamp(p, opt, idx):
    if opt.get("stamps"):
        p(f"s_memrealtime s[{64+2*idx}:{65+2*idx}]")

def k1_path(p, typ, opt):
    NB = 7 if typ else 6
    rowB = 7168 if typ else 6144
    nseg = 4 if typ else 3
    def acc(j, mb): return ACC + 16 * j + 4 * mb
    def xf(st, mb): return FR[st] + 4 * mb
    def wf(st, j): return FR[st] + 16 + 4 * j
    if typ:
        srd(p, S_W, 12, 7340032); srd(p, S_AUX, 14, 7168)
    else:
        srd(p, S_W, 6, 6291456); srd(p, S_AUX, 8, 65536)
    p(f"""v_lshrrev_b32 v{V_T}, 3, v{V_LANE}
    s_lshl_b32 s{S_T}, s{S_WV}, 3
    v_add_u32 v{V_T}, s{S_T}, v{V_T}
    s_mov_b32 s{S_T+1}, {rowB}
    v_mul_lo_u32 v{V_OW}, v{V_T}, s{S_T+1}
    v_bfe_u32 v{V_T}, v{V_LANE}, 4, 1
    s_and_b32 s{S_T}, s{S_WV}, 1
    s_lshl_b32 s{S_T}, s{S_T}, 1
    v_or_b32 v{V_T}, s{S_T}, v{V_T}
    v_lshlrev_b32 v{V_T}, 1, v{V_T}
    v_and_b32 v{V_T2}, 7, v{V_LANE}
    v_xor_b32 v{V_T}, v{V_T}, v{V_T2}
    v_lshl_add_u32 v{V_OW}, v{V_T}, 4, v{V_OW}""")
    if typ:
        p(f"""s_mul_i32 s{S_T}, s{S_C}, 448
        s_and_b32 s{S_T+1}, s{S_C}, 1
        s_lshl_b32 s{S_T+1}, s{S_T+1}, 6
        s_sub_u32 s{S_T}, s{S_T}, s{S_T+1}
        v_add_u32 v{V_OW}, s{S_T}, v{V_OW}""")
    else:
        p(f"""s_lshl_b32 s{S_T}, s{S_C}, 7
        v_add_u32 v{V_OW}, s{S_T}, v{V_OW}
        v_add_u32 v{V_OW+1}, 0x1000, v{V_OW}""")
    p(f"s_mul_i32 s{S_SOW}, s{S_KT}, {64*rowB}")
    def dma_stage(t):
        sl = t & 1
        ops = []
        for i in range(4):
            ops.append((f"s_add_u32 m0, s{S_MX}, {sl*32768 + i*8192}", f"buffer_load_dwordx4 v{V_OX+i}, s[{S_X}:{S_X+3}], s{S_SOX} offen lds"))
        for s in range(nseg):
            if typ: vo, off = V_OW, 128 * s
            else: vo, off = (V_OW, 2048 * s) if s < 2 else (V_OW + 1, 0)
            o = f" offset:{off}" if off else ""
            ops.append((f"s_add_u32 m0, s{S_MX}, {65536 + sl*32768 + s*8192 - off}", f"buffer_load_dwordx4 v{vo}, s[{S_W}:{S_W+3}], s{S_SOW} offen{o} lds"))
        x, w = ops[:4], ops[4:]
        o2 = []
        for i in range(4):
            o2.append(x[i])
            if i < len(w): o2.append(w[i])
        return o2
    ADV = f"""s_add_u32 s{S_KT}, s{S_KT}, 1
    s_and_b32 s{S_KT}, s{S_KT}, 15
    s_lshl_b32 s{S_SOX}, s{S_KT}, 7
    s_mul_i32 s{S_SOW}, s{S_KT}, {64*rowB}"""
    if not typ:
        p(f"""s_and_b32 s{S_T}, s{S_WV}, 3
        s_lshl_b32 s{S_T}, s{S_T}, 10
        s_lshl_b32 s{S_T+1}, s{S_C}, 12
        s_add_u32 s{S_T+1}, s{S_T+1}, s{S_T}
        s_add_u32 m0, s{S_T}, 131072
        v_lshlrev_b32 v{V_T}, 4, v{V_LANE}
        buffer_load_dwordx4 v{V_T}, s[{S_AUX}:{S_AUX+3}], s{S_T+1} offen lds""", tag="wphi")
    for t in range(2):
        for m, d in dma_stage(t):
            p(m); p(d, tag=f"st{t}")
        p(ADV)
    p(f"""v_lshrrev_b32 v{V_T}, 4, v{V_LANE}
    v_lshlrev_b32 v{V_T}, 3, v{V_T}
    v_bfe_u32 v{V_T2}, v{V_LANE}, 2, 2
    v_add_u32 v{V_T}, v{V_T}, v{V_T2}
    v_lshlrev_b32 v{V_T}, 7, v{V_T}
    v_and_b32 v{V_T2}, 3, v{V_LANE}
    v_lshl_add_u32 v{V_T}, v{V_T2}, 3, v{V_T}
    v_add_u32 v{V_T}, 0x10000, v{V_T}
    v_bfe_u32 v{V_T2}, v{V_LANE}, 3, 2""")
    def wa(dst, s_cb):
        p(f"""s_and_b32 s{S_T+2}, s{s_cb}, 3
        s_lshr_b32 s{S_T+3}, s{s_cb}, 2
        s_lshl_b32 s{S_T+3}, s{S_T+3}, 13
        v_xor_b32 v{dst}, s{S_T+2}, v{V_T2}
        v_lshl_add_u32 v{dst}, v{dst}, 5, v{V_T}
        v_add_u32 v{dst}, s{S_T+3}, v{dst}""")
    if typ:
        p(f"""s_and_b32 s{S_T}, s{S_C}, 1
        s_lshl_b32 s{S_T}, s{S_T}, 1
        s_add_u32 s{S_T+1}, s{S_T}, s{S_WN}
        s_add_u32 s{S_T+1}, s{S_T+1}, 6""")
        wa(V_WA + 4, S_T + 1)
        p(f"s_lshl_b32 s{S_T+1}, s{S_WN}, 3\ns_add_u32 s{S_T+1}, s{S_T+1}, s{S_T}")
        for qq in range(4):
            wa(V_WA + qq, S_T + 1)
            p(f"s_add_u32 s{S_T+1}, s{S_T+1}, 1")
    else:
        p(f"s_lshl_b32 s{S_T+1}, s{S_WN}, 1")
        wa(V_WA, S_T + 1)
        p(f"s_add_u32 s{S_T+1}, s{S_T+1}, 1")
        wa(V_WA + 1, S_T + 1)
    def w_addr(j):
        if typ:
            return (V_WA + 4, 0) if j == 0 else (V_WA + ((j - 1) & 3), ((j - 1) >> 2) * 8192)
        return (V_WA + (j & 1), (j >> 1) * 8192)
    def reads(st, slot, ks):
        ops = []
        for mb in range(4):
            ops.append(f"ds_read_b128 {q(xf(st, mb))}, v{V_XA+ks} offset:{slot*32768 + mb*2048}")
        for j in range(NB):
            va, o = w_addr(j)
            for h in range(2):
                ops.append(f"ds_read_b64_tr_b16 {q(wf(st, j)+2*h, 2)}, v{va} offset:{slot*32768 + o + ks*4096 + h*512}")
        return ops
    def mfmas(st, first, xs=None, ws=None):
        o = []
        for j in range(NB):
            for mb in range(4):
                a = acc(j, mb)
                W = q(ws(j) if ws else wf(st, j)); X = q(xs(mb) if xs else xf(st, mb))
                c = "0" if first else q(a)
                if (not typ) and j >= 4: o.append(f"{MF} {q(a)}, {X}, {W}, {c}")
                else: o.append(f"{MF} {q(a)}, {W}, {X}, {c}")
        return o
    row_stats(p, opt)
    p.wait_vm("st0")
    p("s_barrier")
    stamp(p, opt, 1)
    for o in reads(0, 0, 0): p(o)
    def colsum(st, step):
        end = p.label("L_cs")
        for wm in range(4):
            nxt = p.label("L_cs") if wm < 3 else None
            if nxt: p(f"s_cmp_lg_u32 s{S_WM}, {wm}\ns_cbranch_scc1 {nxt}")
            for e, j in enumerate((wm, wm + 4)):
                if j < NB:
                    a = V_CSA + 4 * e
                    p(f"{MF} {q(a)}, {q(wf(st, j))}, {q(V_ONES)}, {'0' if step == 0 else q(a)}")
            if nxt: p(f"s_branch {end}\n{nxt}:")
        p(f"{end}:")
    nm = NB * 4
    for t in range(NST):
        p.mark(f"k1{typ}_{t}")
        sl = t & 1
        p.wait_ds()
        side = []
        rd = reads(1, sl, 1)
        span = int(nm * opt.get("rdspan", 0.7))
        for i, o in enumerate(rd): side.append((i * span // len(rd), o, None))
        if t == 2:
            side.append((nm - 6, cs_store(typ), "cs"))
        interleave(p, mfmas(0, t == 0), side)
        if t < 2: colsum(0, 2 * t)
        p.wait_ds()
        if t + 1 < NST:
            p.wait_vm(f"st{t+1}")
        p("s_barrier")
        if t == 3:
            sig = p.label("L_sig")
            p(f"""s_cmp_lg_u32 s{S_WV}, 0
            s_cbranch_scc1 {sig}
            s_mov_b64 exec, 1
            v_mov_b32 v{V_T}, 1
            s_lshr_b32 s{S_T}, s2, 5
            s_lshl_b32 s{S_T}, s{S_T}, 2
            s_lshl_b32 s{S_T+1}, s{S_C}, 2""")
            p(f"buffer_atomic_add v{V_T}, off, s[{S_DBG}:{S_DBG+3}], s{S_T} sc1", opt=True)
            p(f"buffer_atomic_add v{V_T}, off, s[{S_DBG}:{S_DBG+3}], s{S_T+1} offset:{32 + 64*typ} sc1", opt=True)
            p(f"s_mov_b64 exec, -1\n{sig}:")
        side = []
        if t + 1 < NST:
            rd = reads(0, sl ^ 1, 0)
            for i, o in enumerate(rd): side.append((i * span // len(rd), o, None))
        if t + 2 < NST:
            d = dma_stage(t + 2)
            dsp = opt.get("dmaspan", 2)
            for i, (m, ld) in enumerate(d):
                side.append((i * dsp, m, None)); side.append((i * dsp + 1, ld, f"st{t+2}"))
            side.append((len(d) * dsp + 1, ADV, None))
        interleave(p, mfmas(1, False), side)
        if t < 2: colsum(1, 2 * t + 1)
    p.mark(f"k1{typ}_{NST}")
    stamp(p, opt, 2)
    XS = 144
    WSF = 160
    RAW = 192
    PR = 216
    R4 = 224
    poll = p.label("L_poll"); go = p.label("L_go")
    p(f"""s_lshl_b32 s{S_T}, s{S_R}, 2
    s_lshl_b32 s{S_T+1}, s{S_C}, 2
    s_mov_b32 s63, 0x20000
    {poll}:
    buffer_load_dword v{V_T2}, off, s[{S_DBG}:{S_DBG+3}], s{S_T} sc1
    buffer_load_dword v{V_T2+1}, off, s[{S_DBG}:{S_DBG+3}], s{S_T+1} offset:{32 + 64*typ} sc1
    s_waitcnt vmcnt(0)
    v_readfirstlane_b32 s{S_T+2}, v{V_T2}
    v_readfirstlane_b32 s{S_T+3}, v{V_T2+1}
    s_lshl_b32 s{S_T+3}, s{S_T+3}, 8
    s_add_u32 s{S_T+2}, s{S_T+2}, s{S_T+3}
    s_cmp_eq_u32 s{S_T+2}, {32 + 8*256}
    s_cbranch_scc1 {go}
    s_sleep 2
    s_sub_u32 s63, s63, 1
    s_cmp_lg_u32 s63, 0
    s_cbranch_scc1 {poll}
    {go}:""")
    p(f"""s_lshl_b32 s{S_T}, s{S_R}, 2
    s_add_u32 s{S_T}, s{S_T}, s{S_WM}
    s_lshl_b32 s{S_T+4}, s{S_T}, 8
    s_lshl_b32 s{S_T}, s{S_T}, 10
    s_add_u32 s{S_T}, s{S_T}, {STAT4}
    v_and_b32 v{V_T}, 15, v{V_LANE}
    v_lshlrev_b32 v{V_T2}, 4, v{V_T}""")
    for mb in range(4):
        p(f"buffer_load_dwordx4 {q(XS+4*mb)}, v{V_T2}, s[{S_WS}:{S_WS+3}], s{S_T} offen offset:{mb*256} sc1")
    p(f"""v_lshrrev_b32 v{V_T2+1}, 4, v{V_LANE}
    s_mov_b32 s{S_T+1}, {2*6656*4}
    v_mul_lo_u32 v{V_T2+2}, v{V_T2+1}, s{S_T+1}
    v_lshl_add_u32 v{V_T2+2}, v{V_T}, 2, v{V_T2+2}
    v_add_u32 v{V_T2+3}, {6656*4}, v{V_T2+2}""")
    if typ:
        p(f"""s_mul_i32 s{S_T+1}, s{S_C}, 14
        s_add_u32 s{S_T+2}, s{S_T+1}, s{S_WN}
        s_add_u32 s{S_T+2}, s{S_T+2}, 6
        s_lshl_b32 s{S_T+3}, s{S_WN}, 3
        s_add_u32 s{S_T+1}, s{S_T+1}, s{S_T+3}
        s_lshl_b32 s{S_T+5}, s{S_T+2}, 5
        s_lshl_b32 s{S_T+6}, s{S_T+1}, 5
        s_lshl_b32 s{S_T+2}, s{S_T+2}, 6
        s_lshl_b32 s{S_T+1}, s{S_T+1}, 6
        s_add_u32 s{S_T+2}, s{S_T+2}, {CS + 3072*4}
        s_add_u32 s{S_T+1}, s{S_T+1}, {CS + 3072*4}""")
        for j in range(NB):
            so, off = (S_T + 2, 0) if j == 0 else (S_T + 1, 64 * (j - 1))
            for e in range(2):
                p(f"buffer_load_dword v{RAW+2*j+e}, v{V_T2+2+e}, s[{S_WS}:{S_WS+3}], s{so} offen offset:{off} sc1")
        p(f"""v_cmp_ne_u32 vcc, 0, v{V_T2+1}
        v_lshlrev_b32 v{V_T}, 1, v{V_T}
        v_mov_b32 v{V_T2}, 0x40000000
        v_cndmask_b32 v{V_T2}, v{V_T}, v{V_T2}, vcc""")
        for j in range(NB):
            so, off = (S_T + 5, 0) if j == 0 else (S_T + 6, 32 * (j - 1))
            p(f"buffer_load_ushort v{WSF+4*j+2}, v{V_T2}, s[{S_AUX}:{S_AUX+3}], s{so} offen offset:{off}")
    else:
        p(f"""s_lshl_b32 s{S_T+1}, s{S_C}, 1
        s_add_u32 s{S_T+1}, s{S_T+1}, s{S_WN}
        s_lshl_b32 s{S_T+1}, s{S_T+1}, 7
        s_add_u32 s{S_T+1}, s{S_T+1}, {CS}
        s_add_u32 s{S_T+2}, s{S_T+1}, 4096
        s_add_u32 s{S_T+3}, s{S_T+1}, 8192""")
        for j in range(NB):
            for e in range(2):
                p(f"buffer_load_dword v{RAW+2*j+e}, v{V_T2+2+e}, s[{S_WS}:{S_WS+3}], s{S_T+1+(j>>1)} offen offset:{64*(j&1)} sc1")
        p(f"""v_lshlrev_b32 v{V_T2}, 4, v{V_T2+1}
        s_add_u32 s{S_T+4}, s{S_T+4}, {RSTD}""")
        for mb in range(4):
            p(f"buffer_load_dwordx4 {q(R4+4*mb)}, v{V_T2}, s[{S_WS}:{S_WS+3}], s{S_T+4} offen offset:{mb*64} sc1")
    p(f"s_mov_b32 s{S_T+7}, {LOG2E:#x}")
    for mb in range(4):
        p(f"""v_mov_b32 v{PR+2*mb+1}, v{XS+4*mb+3}
        v_mul_f32 v{PR+2*mb}, s{S_T+7}, v{XS+4*mb+3}
        v_mov_b32 v{XS+4*mb+3}, 0""")
    for j in range(NB):
        w = WSF + 4 * j; c = RAW + 2 * j
        p(f"""v_add_f32 v{c}, v{c}, v{c+1}
        v_cvt_pk_bf16_f32 v{w}, v{c}, v{c}
        v_and_b32 v{c+1}, 0xffff0000, v{w}
        v_sub_f32 v{c}, v{c}, v{c+1}""")
        if typ:
            p(f"v_lshlrev_b32 v{c+1}, 16, v{w+2}\nv_cvt_pk_bf16_f32 v{w+1}, v{c}, v{c+1}")
        else:
            p(f"v_cvt_pk_bf16_f32 v{w+1}, v{c}, 0\nv_mov_b32 v{w+2}, 0")
        p(f"v_mov_b32 v{w+3}, 0")
    for m in mfmas(0, False, xs=lambda mb: XS + 4 * mb, ws=lambda j: WSF + 4 * j): p(m)
    stamp(p, opt, 3)
    if typ: epi_h(p, opt, acc, PR)
    else: epi_qkv(p, opt, acc, PR, R4)
    stamp(p, opt, 4)
    if opt.get("stamps"): dump_stamps(p, 5)
    p("s_endpgm")

def cs_store(typ):
    T = S_T
    if typ:
        s = f"""s_mul_i32 s{T}, s{S_C}, 14
        s_lshl_b32 s{T+1}, s{S_WN}, 3
        s_add_u32 s{T+1}, s{T+1}, s{T}
        s_add_u32 s{T+1}, s{T+1}, s{S_WM}
        s_add_u32 s{T+2}, s{T+1}, 3
        s_sub_u32 s{T+1}, s{T+1}, 1
        s_add_u32 s{T}, s{T}, s{S_WN}
        s_add_u32 s{T}, s{T}, 6
        s_cmp_eq_u32 s{S_WM}, 0
        s_cselect_b32 s{T+1}, s{T}, s{T+1}
        s_lshl_b32 s{T+1}, s{T+1}, 6
        s_lshl_b32 s{T+2}, s{T+2}, 6
        s_add_u32 s{T+1}, s{T+1}, {3072*4}
        s_add_u32 s{T+2}, s{T+2}, {3072*4}
        s_cmp_lt_u32 s{S_WM}, 3"""
    else:
        s = f"""s_lshl_b32 s{T}, s{S_C}, 1
        s_add_u32 s{T}, s{T}, s{S_WN}
        s_lshl_b32 s{T}, s{T}, 7
        s_and_b32 s{T+2}, s{S_WM}, 1
        s_lshl_b32 s{T+2}, s{T+2}, 6
        s_add_u32 s{T}, s{T}, s{T+2}
        s_lshr_b32 s{T+1}, s{S_WM}, 1
        s_lshl_b32 s{T+1}, s{T+1}, 12
        s_add_u32 s{T+1}, s{T+1}, s{T}
        s_add_u32 s{T+2}, s{T}, 8192
        s_cmp_lt_u32 s{S_WM}, 2"""
    s += f"""
    s_cselect_b32 s{T+2}, s{T+2}, 0x40000000
    s_mul_i32 s{T}, s{S_R}, {6656*4}
    s_add_u32 s{T}, s{T}, {CS}
    s_add_u32 s{T+1}, s{T+1}, s{T}
    s_add_u32 s{T+2}, s{T+2}, s{T}
    v_and_b32 v{V_T}, 48, v{V_LANE}
    s_mov_b32 exec_lo, 0x00010001
    s_mov_b32 exec_hi, 0x00010001
    buffer_store_dwordx4 {q(V_CSA)}, v{V_T}, s[{S_WS}:{S_WS+3}], s{T+1} offen sc1
    buffer_store_dwordx4 {q(V_CSA+4)}, v{V_T}, s[{S_WS}:{S_WS+3}], s{T+2} offen sc1
    s_mov_b64 exec, -1"""
    return s

def row_stats(p, opt):
    X = 32; U = 40; A = 56
    for i in range(8):
        p(f"v_lshlrev_b32 v{U+2*i}, 16, v{X+i}\nv_and_b32 v{U+2*i+1}, 0xffff0000, v{X+i}")
    for i in range(4):
        p(f"v_pk_add_f32 {q(A+2*i,2)}, {q(U+4*i,2)}, {q(U+4*i+2,2)}")
    p(f"""v_pk_add_f32 {q(A,2)}, {q(A,2)}, {q(A+2,2)}
    v_pk_add_f32 {q(A+4,2)}, {q(A+4,2)}, {q(A+6,2)}
    v_pk_add_f32 {q(A,2)}, {q(A,2)}, {q(A+4,2)}
    v_add_f32 v{A}, v{A}, v{A+1}""")
    allreduce64_add(p, A, A + 1)
    p(f"v_mul_f32 v{A+8}, 0xba800000, v{A}")
    for i in range(8):
        p(f"v_pk_add_f32 {q(U+2*i,2)}, {q(U+2*i,2)}, {q(A+8,2)} op_sel_hi:[1,0]")
    p(f"v_pk_mul_f32 {q(A,2)}, {q(U,2)}, {q(U,2)}\nv_pk_mul_f32 {q(A+2,2)}, {q(U+2,2)}, {q(U+2,2)}")
    for i in range(2, 8):
        d = A + 2 * (i & 1)
        p(f"v_pk_fma_f32 {q(d,2)}, {q(U+2*i,2)}, {q(U+2*i,2)}, {q(d,2)}")
    p(f"v_pk_add_f32 {q(A,2)}, {q(A,2)}, {q(A+2,2)}\nv_add_f32 v{A}, v{A}, v{A+1}")
    allreduce64_add(p, A, A + 1)
    O = 68
    p(f"""v_mov_b32 v{A+1}, 0x3727c5ac
    v_fmac_f32 v{A+1}, 0x3a800000, v{A}
    v_rsq_f32 v{O+3}, v{A+1}
    v_cvt_pk_bf16_f32 v{A+2}, v{A+8}, v{A+8}
    v_mul_f32 v{A+1}, v{A+1}, v{O+3}
    v_and_b32 v{A+2}, 0xffff0000, v{A+2}
    v_sub_f32 v{A+2}, v{A+8}, v{A+2}
    v_cvt_pk_bf16_f32 v{O}, v{A+8}, v{A+2}
    v_cvt_pk_bf16_f32 v{O+1}, v{A+8}, v{A+1}
    v_and_b32 v{A+3}, 0xffff0000, v{O+1}
    v_sub_f32 v{A+3}, v{A+1}, v{A+3}
    v_cvt_pk_bf16_f32 v{O+2}, v{A+3}, 0
    s_lshl_b32 s{S_T}, s2, 3
    s_add_u32 s{S_T}, s{S_T}, s{S_WV}
    s_lshl_b32 s{S_T+1}, s{S_T}, 2
    s_lshl_b32 s{S_T}, s{S_T}, 4
    s_add_u32 s{S_T}, s{S_T}, {STAT4}
    s_add_u32 s{S_T+1}, s{S_T+1}, {RSTD}
    s_mov_b64 exec, 1
    buffer_store_dwordx4 {q(O)}, off, s[{S_WS}:{S_WS+3}], s{S_T} sc1
    buffer_store_dword v{O+3}, off, s[{S_WS}:{S_WS+3}], s{S_T+1} sc1
    s_mov_b64 exec, -1""")

def epi_h(p, opt, acc, PR):
    T = S_T
    p(f"""s_lshl_b32 s{T}, s{S_R}, 1
    s_lshr_b32 s{T+1}, s{S_WM}, 1
    s_add_u32 s{T}, s{T}, s{T+1}
    s_mul_i32 s{T}, s{T}, 112
    s_mul_i32 s{T+1}, s{S_C}, 7
    s_add_u32 s{T}, s{T}, s{T+1}
    s_lshl_b32 s{T}, s{T}, 13
    s_and_b32 s{T+1}, s{S_WM}, 1
    s_lshl_b32 s{T+1}, s{T+1}, 12
    s_add_u32 s{T}, s{T}, s{T+1}
    s_add_u32 s{T}, s{T}, {ACT}
    s_lshl_b32 s{T+2}, s{S_WN}, 3
    s_add_u32 s{T+1}, s{T}, s{T+2}
    s_add_u32 s{T+1}, s{T+1}, {3*8192}
    s_lshl_b32 s{T+2}, s{S_WN}, 15
    s_add_u32 s{T}, s{T}, s{T+2}
    v_lshlrev_b32 v{V_T}, 4, v{V_LANE}""")
    TB = [144, 160]
    OUT = [176, 180, 184, 188]
    n = 0
    st = opt.get("st_flags", "sc1")
    def group(srcs, mb, out):
        nonlocal n
        t = TB[n & 1]; n += 1
        P = q(PR + 2 * mb, 2)
        k = len(srcs)
        for i, s in enumerate(srcs): p(f"v_pk_mul_f32 {q(t+2*i,2)}, {q(s,2)}, {P} op_sel_hi:[1,0]")
        for i in range(2 * k): p(f"v_exp_f32 v{t+i}, v{t+i}")
        for i in range(k): p(f"v_pk_fma_f32 {q(t+8+2*i,2)}, {q(t+2*i,2)}, -0.5, -1.0 op_sel_hi:[1,0,0]")
        for i in range(k): p(f"v_pk_fma_f32 {q(t+2*i,2)}, {q(t+2*i,2)}, {q(t+8+2*i,2)}, -1.0 op_sel_hi:[1,1,0]")
        for i in range(2 * k): p(f"v_rcp_f32 v{t+i}, v{t+i}")
        for i in range(k): p(f"v_pk_fma_f32 {q(t+2*i,2)}, {q(t+2*i,2)}, {P}, {P} op_sel:[0,1,1] op_sel_hi:[1,1,1]")
        for i, s in enumerate(srcs): p(f"v_pk_mul_f32 {q(t+2*i,2)}, {q(t+2*i,2)}, {q(s,2)}")
        for i in range(k): p(f"v_cvt_pk_bf16_f32 v{out+i}, v{t+2*i}, v{t+2*i+1}")
    g = 0
    for pp in range(3):
        for mb in range(4):
            a0, a1 = acc(2 * pp + 1, mb), acc(2 * pp + 2, mb)
            out = OUT[g & 3]; g += 1
            group([a0, a0 + 2, a1, a1 + 2], mb, out)
            p(f"buffer_store_dwordx4 {q(out)}, v{V_T}, s[{S_WS}:{S_WS+3}], s{T} offen offset:{mb*1024} {st}")
        if pp < 2: p(f"s_add_u32 s{T}, s{T}, 8192")
    for mb in range(4):
        a0 = acc(0, mb)
        out = OUT[g & 3]; g += 1
        group([a0, a0 + 2], mb, out)
        p(f"buffer_store_dwordx2 {q(out,2)}, v{V_T}, s[{S_WS}:{S_WS+3}], s{T+1} offen offset:{mb*1024} {st}")

def softmax_pm(p, acc, ty, PR, WPH, B, EP, MX, OUTR):
    for mb in range(4):
        for h in range(2):
            a = acc(2 * ty + h, mb)
            p(f"v_cvt_pk_bf16_f32 v{B+4*mb+2*h}, v{a}, v{a+1}\nv_cvt_pk_bf16_f32 v{B+4*mb+2*h+1}, v{a+2}, v{a+3}")
    for mb in range(4):
        for fb in range(2):
            p(f"{MF} {q(acc(2*ty+fb, mb))}, {q(WPH+4*fb)}, {q(B+4*mb)}, 0")
    MN = MX + 4
    for mb in range(4):
        a, b = acc(2 * ty, mb), acc(2 * ty + 1, mb)
        for op3, op2, d in (("v_max3_f32", "v_max_f32", MX + mb), ("v_min3_f32", "v_min_f32", MN + mb)):
            p(f"""{op3} v{d}, v{a}, v{a+1}, v{a+2}
            {op3} v{d}, v{d}, v{a+3}, v{b}
            {op3} v{d}, v{d}, v{b+1}, v{b+2}
            {op2} v{d}, v{d}, v{b+3}""")
    allreduce4x(p, "v_max_f32", [(MX, MX + 1, MX + 2, MX + 3)])
    allreduce4x(p, "v_min_f32", [(MN, MN + 1, MN + 2, MN + 3)])
    C = B
    for mb in range(4):
        p(f"v_mul_f32 v{C+2*mb}, v{MX+mb}, v{PR+2*mb}\nv_mul_f32 v{C+2*mb+1}, v{MN+mb}, v{PR+2*mb}")
    for mb in range(4):
        P = q(PR + 2 * mb, 2); Cc = q(C + 2 * mb, 2)
        srcs = [acc(2 * ty, mb), acc(2 * ty, mb) + 2, acc(2 * ty + 1, mb), acc(2 * ty + 1, mb) + 2]
        e = EP + 8 * mb
        for i, s in enumerate(srcs):
            p(f"v_pk_fma_f32 {q(e+2*i,2)}, {q(s,2)}, {P}, {Cc} op_sel_hi:[1,0,0] neg_lo:[0,0,1] neg_hi:[0,0,1]")
        for i, s in enumerate(srcs):
            p(f"v_pk_fma_f32 {q(s,2)}, {q(s,2)}, {P}, {Cc} op_sel:[0,0,1] op_sel_hi:[1,0,1] neg_lo:[1,0,0] neg_hi:[1,0,0]")
        for i in range(8): p(f"v_exp_f32 v{e+i}, v{e+i}")
        for s in srcs: p(f"v_exp_f32 v{s}, v{s}\nv_exp_f32 v{s+1}, v{s+1}")
    TM = C + 8
    for mb in range(4):
        e = EP + 8 * mb
        srcs = [acc(2 * ty, mb), acc(2 * ty, mb) + 2, acc(2 * ty + 1, mb), acc(2 * ty + 1, mb) + 2]
        for k, (l, d) in enumerate((([e, e + 2, e + 4, e + 6], MX + mb), (srcs, MN + mb))):
            t = TM + 4 * k
            p(f"""v_pk_add_f32 {q(t,2)}, {q(l[0],2)}, {q(l[1],2)}
            v_pk_add_f32 {q(t+2,2)}, {q(l[2],2)}, {q(l[3],2)}
            v_pk_add_f32 {q(t,2)}, {q(t,2)}, {q(t+2,2)}
            v_add_f32 v{d}, v{t}, v{t+1}""")
    allreduce4x(p, "v_add_f32", [(MX, MX + 1, MX + 2, MX + 3), (MN, MN + 1, MN + 2, MN + 3)])
    for mb in range(4):
        p(f"v_rcp_f32 v{C+2*mb}, v{MX+mb}\nv_rcp_f32 v{C+2*mb+1}, v{MN+mb}")
    for mb in range(4):
        e = EP + 8 * mb; Cc = q(C + 2 * mb, 2)
        srcs = [acc(2 * ty, mb), acc(2 * ty, mb) + 2, acc(2 * ty + 1, mb), acc(2 * ty + 1, mb) + 2]
        for i in range(4): p(f"v_pk_mul_f32 {q(e+2*i,2)}, {q(e+2*i,2)}, {Cc} op_sel_hi:[1,0]")
        for s in srcs: p(f"v_pk_mul_f32 {q(s,2)}, {q(s,2)}, {Cc} op_sel:[0,1] op_sel_hi:[1,1]")
        o = OUTR + 8 * mb
        for i in range(4): p(f"v_cvt_pk_bf16_f32 v{o+i}, v{e+2*i}, v{e+2*i+1}")
        for i, s in enumerate(srcs): p(f"v_cvt_pk_bf16_f32 v{o+4+i}, v{s}, v{s+1}")

def epi_qkv(p, opt, acc, PR, R4):
    T = S_T
    WPH = 128; B = 136; EP = 152; MX = 184; OUTR = 240 - 48
    OUTR = EP
    OUTR = 240 - 0
    st = opt.get("st_flags", "sc1")
    p("s_barrier")
    p(f"""v_lshrrev_b32 v{V_T}, 2, v{V_LANE}
    v_lshlrev_b32 v{V_T}, 6, v{V_T}
    v_and_b32 v{V_T2}, 3, v{V_LANE}
    v_lshl_add_u32 v{V_T}, v{V_T2}, 3, v{V_T}
    s_lshl_b32 s{T}, s{S_WN}, 11
    s_add_u32 s{T}, s{T}, 131072
    v_add_u32 v{V_T}, s{T}, v{V_T}""")
    for fb in range(2):
        for h in range(2):
            p(f"ds_read_b64_tr_b16 {q(WPH+4*fb+2*h,2)}, v{V_T} offset:{h*1024 + fb*32}")
    VB = 240
    for db in range(2):
        for mb in range(4):
            a = acc(4 + db, mb)
            p(f"v_pk_mul_f32 {q(a,2)}, {q(a,2)}, {q(R4+4*mb,2)}\nv_pk_mul_f32 {q(a+2,2)}, {q(a+2,2)}, {q(R4+4*mb+2,2)}")
    for db in range(2):
        for mb in range(4):
            a = acc(4 + db, mb); o = VB + 8 * db + 2 * mb
            p(f"v_cvt_pk_bf16_f32 v{o}, v{a}, v{a+1}\nv_cvt_pk_bf16_f32 v{o+1}, v{a+2}, v{a+3}")
    PH = acc(4, 0)
    softmax_pm(p, acc, 1, PR, WPH, B, EP, MX, PH)
    A0 = 192
    p(f"""v_bfe_u32 v{V_T}, v{V_LANE}, 1, 2
    v_lshlrev_b32 v{V_T}, 2, v{V_T}
    v_and_b32 v{V_T2}, 1, v{V_LANE}
    v_or_b32 v{V_T}, v{V_T}, v{V_T2}
    v_bfe_u32 v{V_T2}, v{V_LANE}, 3, 1
    v_lshl_or_b32 v{V_T}, v{V_T2}, 1, v{V_T}
    v_lshrrev_b32 v{V_T2}, 4, v{V_LANE}
    v_xor_b32 v{V_T}, v{V_T}, v{V_T2}
    v_and_b32 v{V_T2}, 15, v{V_LANE}
    v_lshlrev_b32 v{V_T2}, 7, v{V_T2}
    s_mul_i32 s{T}, s{S_WV}, 12288
    v_add_u32 v{V_T2}, s{T}, v{V_T2}""")
    for k in range(4):
        p(f"v_xor_b32 v{A0+k}, {4*k}, v{V_T}\nv_lshl_add_u32 v{A0+k}, v{A0+k}, 3, v{V_T2}")
    for mb in range(4):
        for k in range(4):
            p(f"ds_write_b64 v{A0+k}, {q(PH+8*mb+2*k,2)} offset:{mb*2048}")
    p(f"""v_lshrrev_b32 v{V_T2}, 2, v{V_LANE}
    v_bfe_u32 v{V_T}, v{V_T2}, 1, 2
    v_lshlrev_b32 v{V_T}, 2, v{V_T}
    v_and_b32 v{V_T2+1}, 1, v{V_T2}
    v_or_b32 v{V_T}, v{V_T}, v{V_T2+1}
    v_bfe_u32 v{V_T2+1}, v{V_T2}, 3, 1
    v_lshl_or_b32 v{V_T}, v{V_T2+1}, 1, v{V_T}
    v_and_b32 v{V_T2+1}, 3, v{V_LANE}
    v_xor_b32 v{V_T}, v{V_T}, v{V_T2+1}
    v_lshlrev_b32 v{V_T2}, 7, v{V_T2}
    v_add_u32 v{V_T2}, s{T}, v{V_T2}""")
    for k in range(4):
        p(f"v_xor_b32 v{A0+4+k}, {4*k}, v{V_T}\nv_lshl_add_u32 v{A0+4+k}, v{A0+4+k}, 3, v{V_T2}")
    p.wait_ds()
    PT = EP
    for fk in range(4):
        for t in range(2):
            for h in range(2):
                p(f"ds_read_b64_tr_b16 {q(PT+8*fk+4*t+2*h,2)}, v{A0+4+fk} offset:{t*4096 + h*2048}")
    KV = acc(2, 0)
    for t in range(2):
        for fk in range(4):
            for e in range(3):
                Bop = q(VB + 8 * e + 4 * t) if e < 2 else q(V_ONES)
                d = q(KV + 12 * fk + 4 * e)
                p(f"{MF} {d}, {q(PT+8*fk+4*t)}, {Bop}, {'0' if t == 0 else d}")
    p(f"v_lshlrev_b32 v{V_T}, 4, v{V_LANE}\nv_add_u32 v{V_T2}, s{T}, v{V_T}")
    for i in range(12):
        p(f"ds_write_b128 v{V_T2}, {q(KV+4*i)} offset:{i*1024}")
    p.wait_ds()
    p("s_barrier")
    p(f"""s_mul_i32 s{T}, s{S_WN}, {4*12288}
    s_mul_i32 s{T+1}, s{S_WM}, 3072
    s_add_u32 s{T}, s{T}, s{T+1}
    v_add_u32 v{V_T2}, s{T}, v{V_T}""")
    RD = KV
    for wm in range(4):
        for e in range(3):
            p(f"ds_read_b128 {q(RD+12*wm+4*e)}, v{V_T2} offset:{wm*12288 + e*1024}")
    for i in range(6):
        p(f"v_pk_add_f32 {q(RD+2*i,2)}, {q(RD+2*i,2)}, {q(RD+12+2*i,2)}\nv_pk_add_f32 {q(RD+24+2*i,2)}, {q(RD+24+2*i,2)}, {q(RD+36+2*i,2)}")
    for i in range(6):
        p(f"v_pk_add_f32 {q(RD+2*i,2)}, {q(RD+2*i,2)}, {q(RD+24+2*i,2)}")
    p(f"""s_lshl_b32 s{T+1}, s{S_WN}, 2
    s_add_u32 s{T+1}, s{T+1}, s{S_WM}
    s_mul_i32 s{T+1}, s{T+1}, 3072
    s_mul_i32 s{T+2}, s{S_C}, {8*24576}
    s_add_u32 s{T+1}, s{T+1}, s{T+2}
    s_add_u32 s{T+1}, s{T+1}, {KVP}
    s_mul_i32 s{T+2}, s{S_R}, 24576
    s_add_u32 s{T+2}, s{T+2}, s{T+1}""")
    for e in range(3):
        p(f"buffer_store_dwordx4 {q(RD+4*e)}, v{V_T}, s[{S_WS}:{S_WS+3}], s{T+2} offen offset:{e*1024} sc1")
    p("s_waitcnt vmcnt(0)\ns_barrier")
    sig = p.label("L_sig")
    p(f"""s_lshl_b32 s{T+3}, s{S_C}, 2
    s_cmp_lg_u32 s{S_WV}, 0
    s_cbranch_scc1 {sig}
    s_mov_b64 exec, 1
    v_mov_b32 v{V_T2}, 1""")
    p(f"buffer_atomic_add v{V_T2}, off, s[{S_DBG}:{S_DBG+3}], s{T+3} offset:160 sc1", opt=True)
    p(f"s_mov_b64 exec, -1\n{sig}:")
    PQ = 192
    PQ = 224
    softmax_pm(p, acc, 0, PR, WPH, B, EP, MX, PQ)
    stamp(p, opt, 5)
    poll = p.label("L_poll"); go = p.label("L_go")
    p(f"""s_mov_b32 s63, 0x20000
    {poll}:
    buffer_load_dword v{V_T2}, off, s[{S_DBG}:{S_DBG+3}], s{T+3} offset:160 sc1
    s_waitcnt vmcnt(0)
    v_readfirstlane_b32 s{T+2}, v{V_T2}
    s_cmp_eq_u32 s{T+2}, 8
    s_cbranch_scc1 {go}
    s_sleep 1
    s_sub_u32 s63, s63, 1
    s_cmp_lg_u32 s63, 0
    s_cbranch_scc1 {poll}
    {go}:""")
    LD = ACC
    for r in range(8):
        for e in range(3):
            p(f"buffer_load_dwordx4 {q(LD+12*r+4*e)}, v{V_T}, s[{S_WS}:{S_WS+3}], s{T+1} offen offset:{e*1024} sc1")
        if r < 7: p(f"s_add_u32 s{T+1}, s{T+1}, 24576")
    for a, b in ((0, 1), (2, 3), (4, 5), (6, 7), (0, 2), (4, 6), (0, 4)):
        for i in range(6):
            p(f"v_pk_add_f32 {q(LD+12*a+2*i,2)}, {q(LD+12*a+2*i,2)}, {q(LD+12*b+2*i,2)}")
    CV = LD + 12
    for e in range(3):
        p(f"v_cvt_pk_bf16_f32 v{CV+2*e}, v{LD+4*e}, v{LD+4*e+1}\nv_cvt_pk_bf16_f32 v{CV+2*e+1}, v{LD+4*e+2}, v{LD+4*e+3}")
    p(f"""s_mul_i32 s{T}, s{S_WN}, 6144
    s_add_u32 s{T}, s{T}, 98304
    v_add_u32 v{V_T2}, s{T}, v{V_T}
    s_lshr_b32 s{T+1}, s{S_WM}, 1
    s_mul_i32 s{T+1}, s{T+1}, 3072
    s_and_b32 s{T+2}, s{S_WM}, 1
    s_lshl_b32 s{T+2}, s{T+2}, 3
    s_add_u32 s{T+1}, s{T+1}, s{T+2}
    v_add_u32 v{V_T2+1}, s{T+1}, v{V_T2}""")
    for e in range(3):
        p(f"ds_write_b64 v{V_T2+1}, {q(CV+2*e,2)} offset:{e*1024}")
    p.wait_ds()
    p("s_barrier")
    AF = LD + 24
    for i in range(6):
        p(f"ds_read_b128 {q(AF+4*i)}, v{V_T2} offset:{i*1024}")
    NU = LD + 48
    for hh in range(2):
        for mb in range(4):
            for e in range(3):
                d = q(NU + 12 * mb + 4 * e)
                p(f"{MF} {d}, {q(AF+12*hh+4*e)}, {q(PQ+8*mb+4*hh)}, {'0' if hh == 0 else d}")
    p(f"""s_lshl_b32 s{T}, s{S_R}, 1
    s_lshr_b32 s{T+1}, s{S_WM}, 1
    s_add_u32 s{T}, s{T}, s{T+1}
    s_lshl_b32 s{T}, s{T}, 5
    s_lshl_b32 s{T+1}, s{S_C}, 1
    s_add_u32 s{T}, s{T}, s{T+1}
    s_add_u32 s{T}, s{T}, s{S_WN}
    s_lshl_b32 s{T}, s{T}, 13
    s_and_b32 s{T+1}, s{S_WM}, 1
    s_lshl_b32 s{T+1}, s{T+1}, 12
    s_add_u32 s{T}, s{T}, s{T+1}
    s_add_u32 s{T}, s{T}, {O_OFF}""")
    for mb in range(4):
        n = NU + 12 * mb
        p(f"v_add_f32 v{n+8}, 0x358637bd, v{n+8}")
    for mb in range(4):
        n = NU + 12 * mb
        p(f"v_rcp_f32 v{n+8}, v{n+8}")
    for mb in range(4):
        n = NU + 12 * mb
        for i in range(4): p(f"v_pk_mul_f32 {q(n+2*i,2)}, {q(n+2*i,2)}, {q(n+8,2)} op_sel_hi:[1,0]")
        o = EP + 4 * mb
        for i in range(4): p(f"v_cvt_pk_bf16_f32 v{o+i}, v{n+2*i}, v{n+2*i+1}")
        p(f"buffer_store_dwordx4 {q(o)}, v{V_T}, s[{S_WS}:{S_WS+3}], s{T} offen offset:{mb*1024} {st}")

STAMP_OFF = 0x2000000
def dump_stamps(p, n, base=STAMP_OFF, srdws=S_WS, swv=S_WV):
    p(f"""s_waitcnt vmcnt(0) lgkmcnt(0)
    s_memrealtime s[{64+2*6}:{65+2*6}]
    s_waitcnt lgkmcnt(0)
    s_lshl_b32 s60, s2, 3
    s_add_u32 s60, s60, s{swv}
    s_lshl_b32 s60, s60, 6
    s_add_u32 s60, s60, {base}
    s_mov_b64 exec, 1""")
    for i in range(8):
        p(f"v_mov_b32 v2, s{64+2*i}\nbuffer_store_dword v2, off, s[{srdws}:{srdws+3}], s60 offset:{4*i}")

def gen_k1(opt):
    p = Prog()
    done = "L_k1_exit"
    if opt.get("stamps"):
        for i in range(8): p(f"s_mov_b32 s{64+2*i}, 0")
    stamp(p, opt, 0)
    p(f"""s_cmp_ge_u32 s2, 256
    s_cbranch_scc1 {done}
    s_load_dwordx4 s[4:7], s[0:1], 0
    s_load_dwordx2 s[8:9], s[0:1], 16
    s_load_dwordx4 s[12:15], s[0:1], 40
    s_load_dwordx4 s[16:19], s[0:1], 72
    v_and_b32 v{V_LANE}, 63, v0
    v_lshrrev_b32 v{V_T}, 6, v0
    v_readfirstlane_b32 s{S_WV}, v{V_T}
    s_and_b32 s{S_T}, s2, 1
    s_lshl_b32 s{S_T}, s{S_T}, 2
    s_bfe_u32 s{S_R}, s2, 0x20003
    s_add_u32 s{S_R}, s{S_R}, s{S_T}
    s_bfe_u32 s{S_T}, s2, 0x20001
    s_lshl_b32 s{S_T}, s{S_T}, 2
    s_lshr_b32 s{S_C}, s2, 6
    s_add_u32 s{S_C}, s{S_C}, s{S_T}
    s_and_b32 s{S_WM}, s{S_WV}, 3
    s_lshr_b32 s{S_WN}, s{S_WV}, 2
    s_lshl_b32 s{S_MX}, s{S_WV}, 10
    s_lshl_b32 s{S_KT}, s{S_R}, 1
    s_lshl_b32 s{S_SOX}, s{S_KT}, 7""")
    p(f"""v_lshrrev_b32 v{V_T}, 3, v{V_LANE}
    s_lshl_b32 s{S_T}, s{S_R}, 5
    s_add_u32 s{S_T}, s{S_T}, s{S_WV}
    s_lshl_b32 s{S_T}, s{S_T}, 3
    v_add_u32 v{V_T}, s{S_T}, v{V_T}
    v_lshlrev_b32 v{V_OX}, 11, v{V_T}
    v_bfe_u32 v{V_T}, v{V_T}, 1, 3
    v_and_b32 v{V_T2}, 7, v{V_LANE}
    v_xor_b32 v{V_T}, v{V_T}, v{V_T2}
    v_lshl_add_u32 v{V_OX}, v{V_T}, 4, v{V_OX}
    v_add_u32 v{V_OX+1}, 0x20000, v{V_OX}
    v_add_u32 v{V_OX+2}, 0x40000, v{V_OX}
    v_add_u32 v{V_OX+3}, 0x60000, v{V_OX}""")
    p(f"""v_and_b32 v{V_T}, 15, v{V_LANE}
    s_lshl_b32 s{S_T}, s{S_WM}, 6
    v_add_u32 v{V_T}, s{S_T}, v{V_T}
    v_lshlrev_b32 v{V_XA}, 7, v{V_T}
    v_bfe_u32 v{V_T}, v{V_LANE}, 1, 3
    v_lshrrev_b32 v{V_T2}, 4, v{V_LANE}
    v_xor_b32 v{V_T}, v{V_T}, v{V_T2}
    v_lshl_add_u32 v{V_XA}, v{V_T}, 4, v{V_XA}
    v_xor_b32 v{V_XA+1}, 64, v{V_XA}""")
    for i in range(4): p(f"v_mov_b32 v{V_ONES+i}, 0x3f803f80")
    p("s_waitcnt lgkmcnt(0)")
    srd(p, S_X, 4, 4194304); srd(p, S_WS, 18, WS_SIZE); srd(p, S_DBG, 16, 256)
    p(f"""s_lshl_b32 s{S_T}, s2, 3
    s_add_u32 s{S_T}, s{S_T}, s{S_WV}
    s_lshl_b32 s{S_T}, s{S_T}, 11
    v_lshlrev_b32 v{V_T}, 4, v{V_LANE}
    buffer_load_dwordx4 v[32:35], v{V_T}, s[{S_X}:{S_X+3}], s{S_T} offen
    buffer_load_dwordx4 v[36:39], v{V_T}, s[{S_X}:{S_X+3}], s{S_T} offen offset:1024
    s_bitcmp1_b32 s2, 5
    s_cbranch_scc1 L_k1_h""")
    head = p
    paths = []
    for typ in (0, 1):
        pp = Prog(); pp.n = 1000 * (typ + 1)
        pp.ins = list(head.ins)
        nhead = len(pp.ins)
        pp.mark("PATH")
        k1_path(pp, typ, opt)
        pp.resolve()
        r = pp.roll(f"k1{typ}_", 2, S_LOOP)
        i = next(k for k, x in enumerate(pp.ins) if x.kind == "pseudo" and x.text == "@mark PATH")
        paths.append((pp.ins[:i], pp.ins[i:], r))
    assert [x.text for x in paths[0][0]] == [x.text for x in paths[1][0]]
    fin = Prog()
    fin.ins = paths[0][0] + paths[0][1] + [I("L_k1_h:")] + paths[1][1] + [I(done + ":"), I("s_endpgm")]
    return fin.text(), [x[2] for x in paths]
```

```python
from prog import *
from k1 import ACT, O_OFF, XCH, WS_SIZE, LOG2E, MF, q, srd, dump_stamps, STAMP_OFF
K2_LDS = 131072
V_LANE, V_OX, V_OW, V_T = 1, 2, 3, 4
V_XA = 6
V_XB = 8
V_WA = 10
V_T2 = 14
V_OO = 5
ACC = 16
SAC = 48
FR = (64, 88)
PART = 112
XR = 128
TMP = 136
S_X, S_W2, S_WO, S_WS, S_DBG, S_OUT = 20, 24, 28, 32, 36, 40
S_RT, S_CT, S_KH, S_WV, S_WM, S_WN, S_SOX, S_SOW, S_M1, S_M2, S_LOOP = 44, 45, 46, 47, 48, 49, 50, 51, 52, 53, 54
S_T = 55
NF, NS = 28, 16
NT = NF + NS

def stamp(p, opt, idx):
    if opt.get("stamps"):
        p(f"s_memrealtime s[{64+2*idx}:{65+2*idx}]")

def gen_k2(opt):
    p = Prog(); p.n = 5000
    T = S_T
    if opt.get("stamps"):
        for i in range(8): p(f"s_mov_b32 s{64+2*i}, 0")
    stamp(p, opt, 0)
    p(f"""s_cmp_ge_u32 s2, 256
    s_cbranch_scc1 L_k2_exit
    s_load_dwordx2 s[4:5], s[0:1], 0
    s_load_dwordx2 s[6:7], s[0:1], 24
    s_load_dwordx4 s[8:11], s[0:1], 56
    s_load_dwordx4 s[12:15], s[0:1], 72
    v_and_b32 v{V_LANE}, 63, v0
    v_lshrrev_b32 v{V_T}, 6, v0
    v_readfirstlane_b32 s{S_WV}, v{V_T}
    s_and_b32 s{T}, s2, 1
    s_lshl_b32 s{T}, s{T}, 3
    s_bfe_u32 s{S_RT}, s2, 0x30003
    s_add_u32 s{S_RT}, s{S_RT}, s{T}
    s_bfe_u32 s{T}, s2, 0x10001
    s_lshl_b32 s{T}, s{T}, 2
    s_lshr_b32 s{S_CT}, s2, 6
    s_add_u32 s{S_CT}, s{S_CT}, s{T}
    s_bfe_u32 s{S_KH}, s2, 0x10002
    s_and_b32 s{S_WM}, s{S_WV}, 1
    s_lshr_b32 s{S_WN}, s{S_WV}, 1
    s_lshl_b32 s{S_M1}, s{S_WV}, 10
    s_lshl_b32 s{S_M2}, s{S_WV}, 11""")
    p(f"""v_lshlrev_b32 v{V_T}, 4, v{V_LANE}
    v_add_u32 v{V_OX}, s{S_M2}, v{V_T}
    s_mul_i32 s{S_SOX}, s{S_RT}, 112
    s_mul_i32 s{T}, s{S_KH}, 56
    s_add_u32 s{S_SOX}, s{S_SOX}, s{T}
    s_lshl_b32 s{S_SOX}, s{S_SOX}, 13
    s_add_u32 s{S_SOX}, s{S_SOX}, {ACT}
    s_mul_i32 s{S_SOW}, s{S_KH}, {1792*2048}""")
    p(f"""s_lshr_b32 s{T}, s{S_WV}, 2
    s_lshl_b32 s{T}, s{T}, 3
    s_and_b32 s{T+1}, s{S_WV}, 2
    s_lshl_b32 s{T+1}, s{T+1}, 1
    s_add_u32 s{T}, s{T}, s{T+1}
    s_and_b32 s{T+1}, s{S_WV}, 1
    s_add_u32 s{T}, s{T}, s{T+1}
    s_lshl_b32 s{T+1}, s{S_KH}, 1
    s_add_u32 s{T}, s{T}, s{T+1}
    s_lshl_b32 s{T}, s{T}, 10
    v_add_u32 v{V_OO}, s{T}, v{V_T}""")
    p(f"""v_lshrrev_b32 v{V_T2}, 3, v{V_LANE}
    s_lshl_b32 s{T}, s{S_WV}, 3
    v_add_u32 v{V_T2}, s{T}, v{V_T2}
    v_lshlrev_b32 v{V_OW}, 11, v{V_T2}
    v_lshrrev_b32 v{V_T2}, 4, v{V_LANE}
    v_lshlrev_b32 v{V_T2}, 1, v{V_T2}
    v_and_b32 v{V_T2+1}, 7, v{V_LANE}
    v_xor_b32 v{V_T2}, v{V_T2}, v{V_T2+1}
    v_lshl_add_u32 v{V_OW}, v{V_T2}, 4, v{V_OW}
    s_lshl_b32 s{T}, s{S_CT}, 8
    v_add_u32 v{V_OW}, s{T}, v{V_OW}
    s_waitcnt lgkmcnt(0)""")
    srd(p, S_WS, 14, WS_SIZE); srd(p, S_W2, 8, 7340032)
    def dma_stage(t):
        sl = (t & 3) * 32768
        ops = []
        if t < NF:
            ops.append((f"s_add_u32 m0, s{S_M2}, {sl}", f"buffer_load_dwordx4 v{V_OX}, s[{S_WS}:{S_WS+3}], s{S_SOX} offen lds"))
            W = S_W2
        else:
            ops.append((f"s_add_u32 m0, s{S_M1}, {sl}", f"buffer_load_dwordx4 v{V_OO}, s[{S_WS}:{S_WS+3}], s{S_SOX} offen lds"))
            W = S_WO
        if t < NF:
            ops.append((None, f"buffer_load_dwordx4 v{V_OX}, s[{S_WS}:{S_WS+3}], s{S_SOX} offen offset:1024 lds"))
        ops.append((f"s_add_u32 m0, s{S_M1}, {sl + 16384}", f"buffer_load_dwordx4 v{V_OW}, s[{W}:{W+3}], s{S_SOW} offen lds"))
        ops.append((f"s_add_u32 m0, s{S_M1}, {sl + 16384 + 8192 - 128}", f"buffer_load_dwordx4 v{V_OW}, s[{W}:{W+3}], s{S_SOW} offen offset:128 lds"))
        if t == NF - 1:
            adv = f"""s_lshl_b32 s{S_SOX}, s{S_RT}, 18
            s_add_u32 s{S_SOX}, s{S_SOX}, {O_OFF}
            s_mov_b32 s{S_SOW}, 0"""
        else:
            adv = f"s_add_u32 s{S_SOX}, s{S_SOX}, 16384\ns_add_u32 s{S_SOW}, s{S_SOW}, {64*2048}"
        return ops, adv
    for t in range(4):
        ops, adv = dma_stage(t)
        for m, d in ops:
            if m: p(m)
            p(d, tag=f"st{t}")
        p(adv)
    srd(p, S_WO, 6, 2097152); srd(p, S_X, 4, 4194304); srd(p, S_OUT, 10, 4194304); srd(p, S_DBG, 12, 256)
    p(f"""s_lshl_b32 s{T}, s{S_WM}, 12
    v_add_u32 v{V_XA}, s{T}, v{V_T}
    v_add_u32 v{V_XA+1}, 0x10000, v{V_XA}
    s_lshl_b32 s{T}, s{S_WM}, 11
    v_add_u32 v{V_XB}, s{T}, v{V_T}
    v_add_u32 v{V_XB+1}, 0x10000, v{V_XB}
    v_lshrrev_b32 v{V_T2}, 2, v{V_LANE}
    v_lshlrev_b32 v{V_T2}, 7, v{V_T2}
    v_and_b32 v{V_T2+1}, 3, v{V_LANE}
    v_lshl_add_u32 v{V_T2}, v{V_T2+1}, 3, v{V_T2}
    s_lshr_b32 s{T}, s{S_WN}, 1
    s_lshl_b32 s{T}, s{T}, 13
    s_add_u32 s{T}, s{T}, 16384
    v_add_u32 v{V_T2}, s{T}, v{V_T2}
    v_bfe_u32 v{V_T2+1}, v{V_LANE}, 3, 2
    s_and_b32 s{T}, s{S_WN}, 1
    s_lshl_b32 s{T}, s{T}, 1
    v_xor_b32 v{V_T2+1}, s{T}, v{V_T2+1}
    v_lshl_add_u32 v{V_WA}, v{V_T2+1}, 5, v{V_T2}
    v_xor_b32 v{V_WA+1}, 32, v{V_WA}
    v_add_u32 v{V_WA+2}, 0x10000, v{V_WA}
    v_add_u32 v{V_WA+3}, 0x10000, v{V_WA+1}""")
    def reads(st, t, ks):
        sl = t & 3; hi = sl >> 1; so = (sl & 1) * 32768
        ops = []
        if t < NF:
            for mb in range(4):
                ops.append(f"ds_read_b128 {q(FR[st]+4*mb)}, v{V_XA+hi} offset:{so + (ks*8+mb)*1024}")
        else:
            for e in range(2):
                ops.append(f"ds_read_b128 {q(FR[st]+4*e)}, v{V_XB+hi} offset:{so + (ks*4+e)*1024}")
        for nb in range(2):
            for h in range(2):
                ops.append(f"ds_read_b64_tr_b16 {q(FR[st]+16+4*nb+2*h,2)}, v{V_WA+2*hi+nb} offset:{so + ks*4096 + h*2048}")
        return ops
    def mfmas(st, t, ks):
        o = []
        first = ks == 0 and t in (0, NF)
        for nb in range(2):
            for mb in range(4 if t < NF else 2):
                a = (ACC + 16 * nb + 4 * mb) if t < NF else (SAC + 8 * nb + 4 * mb)
                o.append(f"{MF} {q(a)}, {q(FR[st]+16+4*nb)}, {q(FR[st]+4*mb)}, {'0' if first else q(a)}")
        return o
    p.wait_vm("st0")
    p("s_barrier")
    stamp(p, opt, 1)
    for o in reads(0, 0, 0): p(o)
    for t in range(NT):
        p.mark(f"k2_{t}")
        p.wait_ds()
        mf = mfmas(0, t, 0); nm = len(mf)
        side = []
        rd = reads(1, t, 1)
        for i, o in enumerate(rd): side.append((i * max(nm - 2, 1) // len(rd), o, None))
        if t >= 1 and t + 3 < NT:
            ops, adv = dma_stage(t + 3)
            late = ops[2:]
            for i, (m, d) in enumerate(late):
                pos = 1 + i * (nm // 2)
                if m: side.append((pos - 1, m, None))
                side.append((pos, d, f"st{t+3}"))
            side.append((nm - 1, adv, None))
        interleave(p, mf, side)
        if t == NF:
            snd = p.label("L_snd"); snd2 = p.label("L_snd")
            p(f"""s_lshl_b32 s{T}, s2, 3
            s_add_u32 s{T}, s{T}, s{S_WV}
            s_lshl_b32 s{T}, s{T}, 12
            s_add_u32 s{T}, s{T}, {XCH}
            s_cmp_eq_u32 s{S_KH}, 0
            s_cbranch_scc1 {snd}""")
            for nb in range(2):
                for i in range(8):
                    p(f"v_swap_b32 v{ACC+16*nb+i}, v{ACC+16*nb+8+i}")
            p(f"{snd}:")
            for nb in range(2):
                for e in range(2):
                    p(f"buffer_store_dwordx4 {q(ACC+16*nb+8+4*e)}, v{V_T}, s[{S_WS}:{S_WS+3}], s{T} offen offset:{(2*nb+e)*1024} sc1", tag="send")
        p.wait_ds()
        if t + 1 < NT: p.wait_vm(f"st{t+1}")
        if t == NF + 3: p.wait_vm("send")
        if t + 1 < NT: p("s_barrier")
        if t == NF + 3:
            sig = p.label("L_sig")
            p(f"""s_cmp_lg_u32 s{S_WV}, 0
            s_cbranch_scc1 {sig}
            s_mov_b64 exec, 1
            s_and_b32 s{T}, s2, 3
            s_lshl_b32 s{T}, s{T}, 3
            s_lshl_b32 s{T}, 1, s{T}
            v_mov_b32 v{V_T2}, s{T}
            s_and_b32 s{T+1}, s2, 0xfc""")
            p(f"buffer_atomic_or v{V_T2}, off, s[{S_DBG}:{S_DBG+3}], s{T+1} sc1", opt=True)
            p(f"s_mov_b64 exec, -1\n{sig}:")
        mf = mfmas(1, t, 1); nm = len(mf)
        side = []
        if t + 1 < NT:
            rd = reads(0, t + 1, 0)
            for i, o in enumerate(rd): side.append((i * max(nm - 2, 1) // len(rd), o, None))
        if t + 4 < NT:
            ops, adv = dma_stage(t + 4)
            early = ops[:2]
            for i, (m, d) in enumerate(early):
                pos = 1 + i * (nm // 2)
                if m: side.append((pos - 1, m, None))
                side.append((pos, d, f"st{t+4}"))
        interleave(p, mf, side)
    p.mark(f"k2_{NT}")
    stamp(p, opt, 2)
    p(f"""s_lshl_b32 s{T}, s{S_RT}, 2
    s_lshl_b32 s{T+1}, s{S_WM}, 1
    s_add_u32 s{T}, s{T}, s{T+1}
    s_add_u32 s{T}, s{T}, s{S_KH}
    s_lshl_b32 s{T}, s{T}, 16
    s_lshl_b32 s{T+1}, s{S_CT}, 8
    s_add_u32 s{T}, s{T}, s{T+1}
    s_lshl_b32 s{T+1}, s{S_WN}, 6
    s_add_u32 s{T}, s{T}, s{T+1}
    s_add_u32 s{T+1}, s{T}, 32768
    v_and_b32 v{V_T2}, 15, v{V_LANE}
    v_lshlrev_b32 v{V_T2}, 11, v{V_T2}
    v_bfe_u32 v{V_T2+1}, v{V_LANE}, 4, 1
    v_lshl_add_u32 v{V_T2}, v{V_T2+1}, 5, v{V_T2}
    v_lshrrev_b32 v{V_T2+1}, 5, v{V_LANE}
    v_lshl_add_u32 v{V_T2}, v{V_T2+1}, 4, v{V_T2}""")
    for e in range(2):
        p(f"buffer_load_dwordx4 {q(XR+4*e)}, v{V_T2}, s[{S_X}:{S_X+3}], s{T+e} offen")
    poll = p.label("L_poll"); go = p.label("L_go")
    p(f"""s_xor_b32 s{T+2}, s2, 4
    s_and_b32 s{T+3}, s{T+2}, 0xfc
    s_and_b32 s{T+4}, s{T+2}, 3
    s_lshl_b32 s{T+4}, s{T+4}, 3
    s_mov_b32 s63, 0x20000
    {poll}:
    buffer_load_dword v{TMP}, off, s[{S_DBG}:{S_DBG+3}], s{T+3} sc1
    s_waitcnt vmcnt(0)
    v_readfirstlane_b32 s{T+5}, v{TMP}
    s_bitcmp1_b32 s{T+5}, s{T+4}
    s_cbranch_scc1 {go}
    s_sleep 1
    s_sub_u32 s63, s63, 1
    s_cmp_lg_u32 s63, 0
    s_cbranch_scc1 {poll}
    {go}:
    s_lshl_b32 s{T+2}, s{T+2}, 3
    s_add_u32 s{T+2}, s{T+2}, s{S_WV}
    s_lshl_b32 s{T+2}, s{T+2}, 12
    s_add_u32 s{T+2}, s{T+2}, {XCH}""")
    for i in range(4):
        p(f"buffer_load_dwordx4 {q(PART+4*i)}, v{V_T}, s[{S_WS}:{S_WS+3}], s{T+2} offen offset:{i*1024} sc1")
    p(f"s_mov_b32 s{T+4}, {LOG2E | 0x80000000:#x}\ns_mov_b32 s{T+5}, {LOG2E | 0x80000000:#x}")
    assert (T + 4) % 2 == 1 or True
    NL = T + 5 if (T + 5) % 2 == 0 else T + 4
    p(f"s_mov_b32 s{NL+1}, {LOG2E | 0x80000000:#x}")
    for e in range(2):
        f = [ACC + 4 * e, ACC + 4 * e + 2, ACC + 16 + 4 * e, ACC + 16 + 4 * e + 2]
        pr = [PART + 4 * e, PART + 4 * e + 2, PART + 8 + 4 * e, PART + 8 + 4 * e + 2]
        s = [SAC + 4 * e, SAC + 4 * e + 2, SAC + 8 + 4 * e, SAC + 8 + 4 * e + 2]
        t = TMP + 8 * e
        for i in range(4): p(f"v_pk_add_f32 {q(f[i],2)}, {q(f[i],2)}, {q(pr[i],2)}")
        for i in range(4): p(f"v_pk_mul_f32 {q(t+2*i,2)}, {q(f[i],2)}, s[{NL}:{NL+1}]")
        for i in range(8): p(f"v_exp_f32 v{t+i}, v{t+i}")
        for i in range(4): p(f"v_pk_add_f32 {q(t+2*i,2)}, {q(t+2*i,2)}, 1.0 op_sel_hi:[1,0]")
        for i in range(8): p(f"v_rcp_f32 v{t+i}, v{t+i}")
        for i in range(4): p(f"v_pk_mul_f32 {q(f[i],2)}, {q(f[i],2)}, {q(s[i],2)}")
        for i in range(4): p(f"v_pk_mul_f32 {q(t+2*i,2)}, {q(t+2*i,2)}, {q(f[i],2)}")
        for i in range(4): p(f"v_permlane16_swap_b32 v{t+i}, v{t+4+i}")
        u = TMP + 16 + 8 * e
        for i in range(4):
            p(f"v_lshlrev_b32 v{u+2*i}, 16, v{XR+4*e+i}\nv_and_b32 v{u+2*i+1}, 0xffff0000, v{XR+4*e+i}")
        for i in range(4): p(f"v_pk_add_f32 {q(t+2*i,2)}, {q(t+2*i,2)}, {q(u+2*i,2)}")
        for i in range(4): p(f"v_cvt_pk_bf16_f32 v{u+i}, v{t+2*i}, v{t+2*i+1}")
        p(f"buffer_store_dwordx4 {q(u)}, v{V_T2}, s[{S_OUT}:{S_OUT+3}], s{T+e} offen {opt.get('out_flags', '')}")
    stamp(p, opt, 4)
    if opt.get("stamps"): dump_stamps(p, 5, base=STAMP_OFF + 0x100000, srdws=S_WS, swv=S_WV)
    p("L_k2_exit:\ns_endpgm")
    p.resolve()
    r1 = p.roll("k2_", 4, S_LOOP)
    r2 = p.roll("k2_", 4, S_LOOP)
    return p.text(), (r1, r2)
```

```python
import re

REG_RE = re.compile(r"\b([vas])(?:\[(\d+):(\d+)\]|(\d+))")

def regs_of(tok):
    out = set()
    for m in REG_RE.finditer(tok):
        k = m.group(1)
        if m.group(2) is not None:
            for i in range(int(m.group(2)), int(m.group(3)) + 1): out.add((k, i))
        else:
            out.add((k, int(m.group(4))))
    if re.search(r"\bvcc\b", tok): out.add(("s", "vcc"))
    if re.search(r"\bm0\b", tok): out.add(("s", "m0"))
    if re.search(r"\bexec\b", tok): out.add(("s", "exec"))
    return out

TRANS = ("v_exp_f32", "v_log_f32", "v_rcp_f32", "v_rsq_f32", "v_sqrt_f32", "v_sin_f32", "v_cos_f32")

class I:
    __slots__ = ("text", "op", "kind", "dst", "src", "tag", "opt", "srcc", "passes", "wide_store", "is_trans", "lds_dma", "dpp", "raw")
    def __init__(self, text, tag=None, opt=False):
        self.text = text; self.tag = tag; self.opt = opt
        self.dst = set(); self.src = set(); self.srcc = set(); self.passes = 0
        self.wide_store = False; self.is_trans = False; self.lds_dma = False; self.dpp = False
        t = text.split(";")[0].strip()
        if t.endswith(":") or t.startswith(".") or t.startswith("@"):
            self.op = t; self.kind = "label" if t.endswith(":") else ("pseudo" if t.startswith("@") else "dir"); return
        parts = t.split(None, 1)
        self.op = op = parts[0]
        rest = parts[1] if len(parts) > 1 else ""
        ops = [o.strip() for o in rest.split(",")]
        if op.startswith("v_mfma"):
            self.kind = "mfma"
            self.dst = regs_of(ops[0]); self.srcc = regs_of(ops[3].split()[0])
            self.src = regs_of(ops[1]) | regs_of(ops[2])
            self.passes = 4 if "16x16x32" in op else (8 if ("32x32x16" in op or "16x16x4_f32" in op) else 16)
        elif op.startswith("v_"):
            self.kind = "valu"
            self.is_trans = op.replace("_e32", "").replace("_e64", "") in TRANS
            self.dpp = "_dpp" in op or "row_" in rest or "quad_perm" in rest
            if op.startswith(("v_permlane", "v_swap")):
                self.dst = regs_of(ops[0]) | regs_of(ops[1]); self.src = set(self.dst)
            elif op.startswith("v_cmp"):
                self.dst = regs_of(ops[0]); self.src = set().union(*[regs_of(o) for o in ops[1:]])
            else:
                self.dst = regs_of(ops[0])
                rs = ops[1:]
                if op.startswith(("v_add_co", "v_sub_co", "v_addc_co", "v_subb_co", "v_div_scale", "v_mad_u64")):
                    self.dst |= regs_of(ops[1]); rs = ops[2:]
                self.src = set().union(*[regs_of(o) for o in rs]) if rs else set()
                if op.startswith(("v_fmac", "v_dot2c", "v_pk_fmac", "v_writelane")) or self.dpp: self.src |= regs_of(ops[0])
                if op.startswith("v_cndmask") and len(ops) == 3: self.src.add(("s", "vcc"))
        elif op.startswith("ds_"):
            self.kind = "ds"
            if op.startswith(("ds_read", "ds_bpermute", "ds_permute", "ds_swizzle")):
                self.dst = regs_of(ops[0]); self.src = set().union(*[regs_of(o.split()[0]) for o in ops[1:]])
            else:
                self.src = set().union(*[regs_of(o.split()[0]) for o in ops])
        elif op.startswith(("buffer_", "global_")):
            self.kind = "vmem"
            toks = rest
            if op.startswith("buffer_load") or op.startswith("global_load"):
                if re.search(r"\blds\b", rest):
                    self.lds_dma = True
                    self.src = regs_of(rest) | {("s", "m0")}
                else:
                    self.dst = regs_of(ops[0]); self.src = set().union(*[regs_of(o) for o in ops[1:]])
            elif "atomic" in op:
                self.src = regs_of(rest)
                if re.search(r"\bsc0\b", rest): self.dst = regs_of(ops[0])
            elif op.startswith(("buffer_wbl2", "buffer_inv")):
                pass
            else:
                self.src = regs_of(rest)
                self.wide_store = op.endswith(("x3", "x4"))
                self.raw = regs_of(ops[0] if op.startswith("buffer") else ops[1])
        elif op.startswith(("s_load", "s_memtime", "s_memrealtime", "s_buffer_load")):
            self.kind = "smem"
            self.dst = regs_of(ops[0]); self.src = set().union(*[regs_of(o) for o in ops[1:]]) if len(ops) > 1 else set()
        elif op.startswith("s_"):
            self.kind = "salu"
            if op.startswith(("s_cmp", "s_cbranch", "s_branch", "s_waitcnt", "s_barrier", "s_nop", "s_endpgm", "s_sleep", "s_setprio", "s_bitcmp")):
                self.src = regs_of(rest)
            else:
                self.dst = regs_of(ops[0]); self.src = set().union(*[regs_of(o) for o in ops[1:]]) if len(ops) > 1 else set()
                if "saveexec" in op: self.dst.add(("s", "exec"))
        else:
            raise ValueError("unknown instruction: " + text)
    def states(self):
        if self.kind in ("label", "dir", "pseudo"): return 0
        if self.op == "s_nop": return int(self.text.split()[1], 0) + 1
        return 1

class Prog:
    def __init__(self):
        self.ins = []
        self.n = 0
    def __call__(self, s, tag=None, opt=False):
        for l in s.split("\n"):
            l = l.strip()
            if l and not l.startswith(";"):
                self.ins.append(I(l, tag, opt))
    def label(self, base="L"):
        self.n += 1
        return f"{base}_{self.n}"
    def wait_vm(self, tag):   self.ins.append(I(f"@wait_vm {tag}"))
    def wait_ds(self):        self.ins.append(I("@wait_ds"))
    def mark(self, name):     self.ins.append(I(f"@mark {name}"))

    def resolve(self):
        out = []
        vm = []
        lg = []
        def emit_wait(vmn=None, lgn=None):
            s = "s_waitcnt"
            if vmn is not None: s += f" vmcnt({min(vmn, 63)})"
            if lgn is not None: s += f" lgkmcnt({min(lgn, 15)})"
            if out and out[-1].op == "s_waitcnt" and getattr(out[-1], "tag", None) == "auto":
                prev = out.pop().text
                pv = re.search(r"vmcnt\((\d+)\)", prev); pl = re.search(r"lgkmcnt\((\d+)\)", prev)
                v2 = [x for x in (vmn, int(pv.group(1)) if pv else None) if x is not None]
                l2 = [x for x in (lgn, int(pl.group(1)) if pl else None) if x is not None]
                s = "s_waitcnt"
                if v2: s += f" vmcnt({min(min(v2), 63)})"
                if l2: s += f" lgkmcnt({min(min(l2), 15)})"
            out.append(I(s, tag="auto"))
        def wait_vm_idx(idx):
            n = sum(1 for x in vm[idx + 1:] if not x.opt)
            emit_wait(vmn=n)
            del vm[:idx + 1]
        def wait_lg_idx(idx):
            if any(x.kind == "smem" for x in lg):
                emit_wait(lgn=0); del lg[:]
            else:
                n = sum(1 for x in lg[idx + 1:] if not x.opt)
                emit_wait(lgn=n); del lg[:idx + 1]
        for ins in self.ins:
            if ins.kind == "pseudo":
                p = ins.text.split()
                if p[0] == "@wait_vm":
                    idx = max((i for i, x in enumerate(vm) if x.tag == p[1]), default=-1)
                    if idx >= 0: wait_vm_idx(idx)
                elif p[0] == "@wait_ds":
                    if lg: emit_wait(lgn=0); del lg[:]
                else:
                    out.append(ins)
                continue
            if ins.op == "s_waitcnt":
                m = re.search(r"vmcnt\((\d+)\)", ins.text)
                if m:
                    n = int(m.group(1));
                    if n == 0: del vm[:]
                    else: raise ValueError("use tags for counted vmcnt")
                m = re.search(r"lgkmcnt\((\d+)\)", ins.text)
                if m:
                    assert int(m.group(1)) == 0; del lg[:]
                out.append(ins); continue
            touched = ins.dst | ins.src | ins.srcc
            if touched:
                idx = max((i for i, x in enumerate(vm) if x.dst & touched), default=-1)
                if idx >= 0: wait_vm_idx(idx)
                idx = max((i for i, x in enumerate(lg) if x.dst & touched), default=-1)
                if idx >= 0: wait_lg_idx(idx)
            out.append(ins)
            if ins.kind == "vmem": vm.append(ins)
            elif ins.kind in ("ds", "smem"): lg.append(ins)
        self.ins = out
        self.pad_hazards()

    @staticmethod
    def need(p, c):
        n = 0
        vdst = {r for r in p.dst if r[0] in "va"}
        sdst = {r for r in p.dst if r[0] == "s"}
        if p.kind == "valu":
            if c.kind == "mfma" and vdst & (c.src | c.srcc): n = max(n, 2)
            if c.kind == "valu":
                if p.is_trans and not c.is_trans and vdst & c.src: n = max(n, 1)
                if c.op.startswith("v_permlane") and vdst & c.src: n = max(n, 2)
                if c.dpp and vdst & c.src: n = max(n, 2)
                if c.op.startswith(("v_readlane", "v_readfirstlane")) and vdst & c.src: n = max(n, 1)
                if sdst & c.src: n = max(n, 4 if c.op.startswith(("v_readlane", "v_writelane")) else 2)
            if c.kind == "vmem" and sdst & c.src: n = max(n, 5)
            if c.kind in ("salu",) and sdst & c.src: n = max(n, 1)
        if p.kind == "mfma":
            big = {4: 8, 8: 12, 16: 20}[p.passes]
            if c.kind == "mfma":
                if p.dst & c.src: n = max(n, big)
                if p.dst & c.srcc:
                    if not (p.dst == c.srcc and p.passes == c.passes and p.op == c.op): n = max(n, big - 2)
                elif p.dst & c.dst: n = max(n, big)
            elif c.kind in ("valu", "vmem", "ds"):
                if p.dst & (c.src | c.dst): n = max(n, big)
            if c.kind == "valu" and p.srcc & c.dst: n = max(n, {4: 3, 8: 7, 16: 15}[p.passes])
        if p.kind == "vmem" and p.wide_store and (p.raw & c.dst): n = max(n, 2)
        if p.kind == "salu" and ("s", "m0") in p.dst and c.kind == "vmem" and c.lds_dma: n = max(n, 1)
        return n

    def pad_hazards(self):
        out = []
        for ins in self.ins:
            if ins.kind not in ("label", "dir", "pseudo"):
                dist = 0; req = 0
                for p in reversed(out):
                    if dist >= 20: break
                    if p.kind not in ("label", "dir", "pseudo"):
                        req = max(req, self.need(p, ins) - dist)
                    dist += p.states()
                while req > 0:
                    k = min(req, 16)
                    out.append(I(f"s_nop {k-1}", tag="pad")); req -= k
            out.append(ins)
        self.ins = out

    def roll(self, prefix, period, sreg):
        pos = [i for i, x in enumerate(self.ins) if x.kind == "pseudo" and x.text.startswith("@mark " + prefix)]
        blocks = [tuple(y.text for y in self.ins[pos[i] + 1:pos[i + 1]] if y.kind != "pseudo") for i in range(len(pos) - 1)]
        best = (0, 0)
        for s in range(len(blocks)):
            g = blocks[s:s + period]
            if len(g) < period: break
            n = 1
            while blocks[s + n * period:s + (n + 1) * period] == g: n += 1
            if n > best[1]: best = (s, n)
        s, n = best
        if n < 2: return (s, n)
        lab = self.label("L_loop")
        head = self.ins[:pos[s]]
        body = self.ins[pos[s]:pos[s + period]]
        tail = self.ins[pos[s + n * period]:]
        assert not any(x.kind == "label" for x in body)
        self.ins = head + [I(f"s_mov_b32 s{sreg}, {n}"), I(lab + ":")] + body + \
            [I(f"s_sub_u32 s{sreg}, s{sreg}, 1"), I(f"s_cmp_lg_u32 s{sreg}, 0"), I(f"s_cbranch_scc1 {lab}")] + tail
        return (s, n)

    def text(self):
        o = []
        for x in self.ins:
            if x.kind == "pseudo": continue
            o.append(x.text if x.kind == "label" else "    " + x.text)
        return "\n".join(o) + "\n"

def interleave(p, main, side):
    slots = [[] for _ in main]
    for pos, lines, tag in side:
        slots[min(max(pos, 0), len(main) - 1)].append((lines, tag))
    for i, m in enumerate(main):
        p(m)
        for lines, tag in slots[i]:
            p(lines, tag=tag)
```

```python
import sys, json
sys.path.insert(0, "gen")
from asmlib import file_text, NAME
import k1, k2
HEADER = open("cdna_kernels/" + NAME + ".s.ref").read().split("; Override launch")[0].strip().split("\n")
def build(path, opt, which=("k1", "k2")):
    ks = []; launches = []
    if "k1" in which:
        t, r = k1.gen_k1(opt); print("k1 loops", r, "lines", t.count("\n"))
        ks.append(("k1_kernel", t, 256, 102, 256)); launches.append(f"@launch kernel=k1_kernel grid=(256,1,1) block=(512,1,1) lds={k1.K1_LDS}")
    if "k2" in which:
        t, r = k2.gen_k2(opt); print("k2 loops", r, "lines", t.count("\n"))
        ks.append(("k2_kernel", t, 168, 102, 168)); launches.append(f"@launch kernel=k2_kernel grid=(256,1,1) block=(512,1,1) lds={k2.K2_LDS}")
    open(path, "w").write(file_text([h[2:] for h in HEADER] + launches, ks))
if __name__ == "__main__":
    opt = json.loads(sys.argv[2]) if len(sys.argv) > 2 else {}
    build(sys.argv[1], opt)
```
